```python
import torch

def _softmax(x, axis=-1):
    return torch.softmax(x, dim=axis)
def _gelu(x):
    return torch.nn.functional.gelu(x, approximate="tanh")
def _silu(x):
    return torch.nn.functional.silu(x)
def _sigmoid(x):
    return torch.sigmoid(x)
def _layernorm(x, axis=-1, eps=1e-5):
    m = x.mean(dim=axis, keepdim=True)
    v = x.var(dim=axis, keepdim=True, unbiased=False)
    return (x - m) / torch.sqrt(v + eps)
def _scatter_add(tgt, idx, src, axis=0):
    return tgt.clone().index_add_(axis, idx, src)
def _segment_sum(src, seg, n):
    out = torch.zeros((n,) + src.shape[1:], dtype=src.dtype)
    return out.index_add_(0, seg, src)
def _pad(x, pw):
    flat = tuple(v for pair in reversed(pw) for v in pair)
    return torch.nn.functional.pad(x, flat)

kernel_name = 'gated_mix__softmax_full_mha__mha_block__prompt'

def setup_inputs():

    _w = (lambda a: (lambda t: t.to(torch.bfloat16) if t.is_floating_point() else t)(torch.as_tensor(a)))
    def _A_setup():
        B, S, D = 1, 2048, 512
        return {
            "x": _w((lambda *s: torch.randn(*s, dtype=torch.bfloat16) * 0.05)(B, S, D)),
            "wqkv": _w((lambda *s: torch.randn(*s, dtype=torch.bfloat16) * 0.8)(D, 3 * D)),
            "wo": _w((lambda *s: torch.randn(*s, dtype=torch.bfloat16) * 0.05)(D, D)),
        }
    _A_in = _A_setup()

    def _B_setup():
        B, S, D, H = 1, 2048, 512, 32
        return {
            "x": _w((lambda *s: torch.randn(*s, dtype=torch.bfloat16) * 0.05)(B, S, D)),
            "wqkv": _w((lambda *s: torch.randn(*s, dtype=torch.bfloat16) * 0.8)(D, 3 * D)),
            "wo": _w((lambda *s: torch.randn(*s, dtype=torch.bfloat16) * 0.05)(D, D)),
        }
    _B_in = _B_setup()

    return {
        "A_x": _A_in["x"],
        "A_wqkv": _A_in["wqkv"],
        "A_wo": _A_in["wo"],
        "B_x": _B_in["x"],
        "B_wqkv": _B_in["wqkv"],
        "B_wo": _B_in["wo"],
        "gate_w": _w((lambda *s: torch.randn(*s, dtype=torch.bfloat16) * 0.05)(512) * 16.0),
    }

def reference(A_x, A_wqkv, A_wo, B_x, B_wqkv, B_wo, gate_w):
    def _A_ref(x, wqkv, wo):
        B, S, D = x.shape
        H = 32; Dh = D // H
        qkv = (lambda x, *d: x.permute(*d))((x @ wqkv).reshape(B, S, 3, H, Dh), 2, 0, 3, 1, 4)
        q, k, v = qkv[0], qkv[1], qkv[2]
        scale = Dh ** -0.5
        scores = torch.einsum("bhqd,bhkd->bhqk", q, k) * scale
        p = _softmax(scores, axis=-1)
        o = torch.einsum("bhqk,bhkd->bhqd", p, v)
        return (lambda x, *d: x.permute(*d))(o, 0, 2, 1, 3).reshape(B, S, D) @ wo

    def _B_ref(x, wqkv, wo):
        B, S, D = x.shape
        H = 32
        Dh = D // H
        qkv = (lambda x, *d: x.permute(*d))((x @ wqkv).reshape(B, S, 3, H, Dh), 2, 0, 3, 1, 4)
        q, k, v = qkv[0], qkv[1], qkv[2]
        scores = torch.einsum("bhqd,bhkd->bhqk", q, k) * (Dh ** -0.5)
        p = _softmax(scores, axis=-1)
        o = torch.einsum("bhqk,bhkd->bhqd", p, v)
        return (lambda x, *d: x.permute(*d))(o, 0, 2, 1, 3).reshape(B, S, D) @ wo

    x = A_x
    g = _sigmoid((x * gate_w).sum(-1, keepdims=True))
    a = _A_ref(x, A_wqkv, A_wo)
    b = _B_ref(x, B_wqkv, B_wo)
    return g * a + (1 - g) * b
```

```python
class Asm:
    def __init__(self):
        self.lines = []
    def __call__(self, s=""):
        for l in s.split("\n"):
            l = l.rstrip()
            if not l.strip():
                continue
            t = l.strip()
            if t.endswith(":") or t.startswith("."):
                self.lines.append(t)
            else:
                self.lines.append("  " + t)
    def c(self, s):
        self.lines.append("  ; " + s)
    def text(self):
        return "\n".join(self.lines) + "\n"

def vr(a, n=1):
    return f"v{a}" if n == 1 else f"v[{a}:{a+n-1}]"
def ar(a, n=1):
    return f"a{a}" if n == 1 else f"a[{a}:{a+n-1}]"
def sr(a, n=1):
    return f"s{a}" if n == 1 else f"s[{a}:{a+n-1}]"

def kernel_header(a, name):
    a(".text")
    a(f".globl {name}")
    a(".p2align 8")
    a(f".type {name},@function")
    a(f"{name}:")

def kernel_desc(a, name, nvgpr, accum, nsgpr=102):
    a('.section .rodata,"a"')
    a(".p2align 6")
    a(f".amdhsa_kernel {name}")
    a(f"  .amdhsa_next_free_vgpr {nvgpr}")
    a(f"  .amdhsa_next_free_sgpr {nsgpr}")
    a(f"  .amdhsa_accum_offset {accum}")
    a("  .amdhsa_group_segment_fixed_size 0")
    a("  .amdhsa_kernarg_size 80")
    a("  .amdhsa_user_sgpr_count 2")
    a("  .amdhsa_user_sgpr_kernarg_segment_ptr 1")
    a("  .amdhsa_system_sgpr_workgroup_id_x 1")
    a("  .amdhsa_float_denorm_mode_32 3")
    a(".end_amdhsa_kernel")
```

```python
import sys, struct
sys.path.insert(0, 'gen')
from asmlib import *

WS_Q, WS_KV, WS_O, WS_G = 0, 4 << 20, 12 << 20, 16 << 20
WS_SIZE = (16 << 20) + 8192
def f2u(x): return struct.unpack("<I", struct.pack("<f", x))[0]
import math
QSCALE = f2u(0.25 * math.log2(math.e))
LOG2E = f2u(math.log2(math.e))

HEADER = open('gated_mix__softmax_full_mha__mha_block__prompt.s.ref').read().split("; Override launch")[0]

XCD_MODE = 8

def decode_GT(a, sG, sT, tmp):
    a(f"s_and_b32 s{tmp}, s2, 7")
    a(f"s_lshr_b32 s{tmp+1}, s2, 3")
    if XCD_MODE == 8:
        a(f"s_and_b32 s{sT}, s{tmp+1}, 7")
        a(f"s_lshr_b32 s{tmp+1}, s{tmp+1}, 3")
        a(f"s_lshl_b32 s{tmp}, s{tmp}, 2")
        a(f"s_add_u32 s{sG}, s{tmp}, s{tmp+1}")
    else:
        a(f"s_and_b32 s{sT}, s{tmp}, 1")
        a(f"s_lshl_b32 s{sT}, s{sT}, 2")
        a(f"s_and_b32 s{sG}, s{tmp+1}, 3")
        a(f"s_add_u32 s{sT}, s{sT}, s{sG}")
        a(f"s_lshr_b32 s{tmp}, s{tmp}, 1")
        a(f"s_lshl_b32 s{tmp}, s{tmp}, 3")
        a(f"s_lshr_b32 s{tmp+1}, s{tmp+1}, 2")
        a(f"s_add_u32 s{sG}, s{tmp}, s{tmp+1}")

STAGE = 45056

def gen_k1(a):
    name = "qkv_kernel"
    kernel_header(a, name)
    a("s_cmp_ge_u32 s2, 256")
    a("s_cbranch_scc1 K1_END")
    a("s_load_dwordx4 s[20:23], s[0:1], 0")
    a("s_load_dwordx2 s[24:25], s[0:1], 32")
    a("s_load_dwordx2 s[16:17], s[0:1], 48")
    a("s_load_dwordx2 s[12:13], s[0:1], 72")
    a("v_lshrrev_b32 v1, 6, v0")
    a("v_and_b32 v0, 63, v0")
    sG, sT, sW, sGl = 27, 28, 26, 29
    decode_GT(a, sG, sT, 30)
    a(f"v_readfirstlane_b32 s{sW}, v1")
    a(f"s_and_b32 s{sGl}, s{sG}, 15")
    a("s_mov_b32 s6, 0x200000")
    a("s_mov_b32 s7, 0x20000")
    a("s_mov_b32 s10, 0x180000")
    a("s_mov_b32 s11, 0x20000")
    a(f"s_mov_b32 s14, {WS_SIZE}")
    a("s_mov_b32 s15, 0x20000")
    a("s_mov_b32 s18, 1024")
    a("s_mov_b32 s19, 0x20000")
    a(f"s_cmp_lt_u32 s{sW}, 4")
    a("s_cbranch_scc1 K1_COMPUTE")
    a(f"s_sub_u32 s{sW}, s{sW}, 4")
    a(f"s_lshl_b32 s30, s{sT}, 8")
    a(f"s_lshl_b32 s31, s{sW}, 6")
    a("s_add_u32 s30, s30, s31")
    a("v_lshrrev_b32 v1, 3, v0")
    a("v_add_u32 v1, s30, v1")
    a("v_lshlrev_b32 v1, 10, v1")
    a("v_lshrrev_b32 v2, 4, v0")
    a("v_xor_b32 v2, v2, v0")
    a("v_and_b32 v2, 7, v2")
    a("v_lshl_add_u32 v2, v2, 4, v1")
    a("v_xor_b32 v3, 64, v2")
    a("v_add_u32 v3, 0x2000, v3")
    a(f"s_lshl_b32 s31, s{sW}, 4")
    a("v_lshrrev_b32 v4, 2, v0")
    a("v_add_u32 v4, s31, v4")
    a("v_mul_u32_u24 v4, 0xc00, v4")
    a("v_and_b32 v5, 3, v0")
    a("v_lshl_add_u32 v4, v5, 4, v4")
    a(f"s_lshl_b32 s31, s{sGl}, 6")
    a("v_add_u32 v4, s31, v4")
    a(f"s_lshl_b32 s32, s{sW}, 13")
    a(f"s_lshl_b32 s33, s{sW}, 10")
    a("s_add_u32 s33, s33, 0x8000")
    a("v_lshlrev_b32 v5, 4, v0")
    a(f"s_cmp_lt_u32 s{sG}, 16")
    a("s_waitcnt lgkmcnt(0)")
    a("s_mov_b32 s4, s20")
    a("s_mov_b32 s5, s21")
    a("s_cselect_b32 s8, s22, s24")
    a("s_cselect_b32 s9, s23, s25")
    def issue(c):
        st = (c % 3) * STAGE
        for sg in range(3):
            a(f"s_add_u32 m0, s33, {st + sg*4096}")
            a(f"s_mov_b32 s34, {c*64*3072 + sg*1024}")
            a("buffer_load_dwordx4 v4, s[8:11], s34 offen lds")
        for i in range(8):
            a(f"s_add_u32 m0, s32, {st + i*1024}")
            a(f"s_mov_b32 s34, {(i & ~1)*8192 + c*128}")
            a(f"buffer_load_dwordx4 v{2 + (i & 1)}, s[4:7], s34 offen lds")
    for c in range(3): issue(c)
    for c in range(8):
        n = {0: 22, 6: 14, 7: 3}.get(c, 11)
        a(f"s_waitcnt vmcnt({n})")
        a("s_barrier")
        if 1 <= c <= 5:
            issue(c + 2)
        if c == 5:
            a(f"s_lshl_b32 s35, s{sT}, 8")
            a(f"s_lshl_b32 s36, s{sG}, 3")
            a("s_add_u32 s35, s35, s36")
            a(f"s_lshl_b32 s36, s{sW}, 1")
            a("s_add_u32 s35, s35, s36")
            a("s_lshl_b32 s36, s35, 10")
            a("buffer_load_dwordx4 v[8:11], v5, s[4:7], s36 offen")
            a("buffer_load_dwordx4 v[12:15], v5, s[4:7], s36 offen offset:1024")
            a("buffer_load_dwordx4 v[16:19], v5, s[16:19], 0 offen")
    a("s_waitcnt vmcnt(0)")
    a("v_mov_b32 v20, 0")
    a("v_mov_b32 v21, 0")
    a("s_nop 1")
    for i in range(4):
        a(f"v_dot2_f32_bf16 v20, v{8+i}, v{16+i}, v20")
        a(f"v_dot2_f32_bf16 v21, v{12+i}, v{16+i}, v21")
    a("s_nop 3")
    for r in (8, 4, 2, 1):
        a(f"v_add_f32_dpp v20, v20, v20 row_ror:{r} row_mask:0xf bank_mask:0xf")
        a(f"v_add_f32_dpp v21, v21, v21 row_ror:{r} row_mask:0xf bank_mask:0xf")
        a("s_nop 1")
    for op in ("v_permlane16_swap_b32", "v_permlane32_swap_b32"):
        a("v_mov_b32 v22, v20")
        a("v_mov_b32 v23, v21")
        a("s_nop 1")
        a(f"{op} v22, v20")
        a(f"{op} v23, v21")
        a("s_nop 1")
        a("v_add_f32 v20, v20, v22")
        a("v_add_f32 v21, v21, v23")
    a("v_cmp_eq_u32 vcc, 1, v0")
    a("s_nop 1")
    a("v_cndmask_b32 v20, v20, v21, vcc")
    a(f"v_mul_f32 v20, {hex(LOG2E | 0x80000000)}, v20")
    a("v_exp_f32 v20, v20")
    a("s_nop 1")
    a("v_add_f32 v20, 1.0, v20")
    a("v_rcp_f32 v20, v20")
    a("s_lshl_b32 s36, s35, 2")
    a(f"s_add_u32 s36, s36, {WS_G}")
    a("v_lshlrev_b32 v21, 2, v0")
    a("s_mov_b64 exec, 3")
    a("buffer_store_dword v20, v21, s[12:15], s36 offen")
    a("s_endpgm")
    a(".p2align 6")
    a("K1_COMPUTE:")
    ACC, XB, WB = 32, 128, 144
    a("v_and_b32 v8, 31, v0")
    a("v_lshrrev_b32 v9, 5, v0")
    a(f"s_lshl_b32 s30, s{sW}, 6")
    a("v_add_u32 v10, s30, v8")
    a("v_lshlrev_b32 v10, 7, v10")
    a("v_bfe_u32 v11, v8, 1, 3")
    a("v_xor_b32 v11, v11, v9")
    for s in range(4):
        a(f"v_xor_b32 v12, {2*s}, v11")
        a(f"v_lshl_add_u32 v{2+s}, v12, 4, v10")
    a("v_bfe_u32 v11, v0, 2, 2")
    a("v_lshl_add_u32 v11, v9, 3, v11")
    a("v_lshlrev_b32 v11, 6, v11")
    a("v_bfe_u32 v12, v0, 4, 1")
    a("v_lshl_add_u32 v11, v12, 5, v11")
    a("v_and_b32 v12, 3, v0")
    a("v_lshl_add_u32 v11, v12, 3, v11")
    a("v_add_u32 v6, 0x8000, v11")
    a("v_lshlrev_b32 v13, 4, v0")
    a("v_bfe_u32 v11, v8, 2, 1")
    a("v_bfe_u32 v12, v8, 3, 1")
    a("v_and_b32 v14, 19, v8")
    a("v_lshl_or_b32 v14, v11, 3, v14")
    a("v_lshl_or_b32 v14, v12, 2, v14")
    a("v_lshlrev_b32 v14, 4, v14")
    a("v_lshl_add_u32 v14, v9, 9, v14")
    a("v_and_b32 v15, 15, v8")
    a("v_lshlrev_b32 v15, 4, v15")
    a("v_lshl_add_u32 v15, v9, 8, v15")
    a("v_lshrrev_b32 v11, 4, v8")
    a("v_lshl_add_u32 v15, v11, 17, v15")
    a("v_add_u32 v15, 0x400, v15")
    a(f"s_lshl_b32 s30, s{sG}, 7")
    a(f"s_lshl_b32 s31, s{sT}, 3")
    a("s_add_u32 s30, s30, s31")
    a(f"s_lshl_b32 s31, s{sW}, 1")
    a("s_add_u32 s30, s30, s31")
    a("s_lshl_b32 s40, s30, 10")
    a(f"s_add_u32 s40, s40, {WS_Q}")
    a("s_add_u32 s41, s40, 0x10000")
    a("s_lshl_b32 s42, s30, 11")
    a(f"s_add_u32 s42, s42, {WS_KV}")
    a("s_add_u32 s43, s42, 0x20000")
    a(f"s_mov_b32 s44, {hex(QSCALE)}")
    a(f"s_mov_b32 s45, {hex(QSCALE)}")
    for i in range(96):
        a(f"v_mov_b32 v{ACC+i}, 0")
    a(f"s_mov_b32 s50, {-2*STAGE & 0xffffffff}")
    a(f"s_mov_b32 s51, {STAGE}")
    a("s_mov_b32 s36, 0")
    a("s_mov_b32 s37, 7")
    def reads(s, b):
        r = []
        for tt in range(2):
            r.append(f"ds_read_b128 {vr(XB+8*b+4*tt, 4)}, v{2+s} offset:{tt*4096}")
        for sg in range(3):
            for i in range(2):
                r.append(f"ds_read_b64_tr_b16 {vr(WB+12*b+4*sg+2*i, 2)}, v6 offset:{(sg*4+s)*1024 + i*256}")
        return r
    def mfmas(b):
        m = []
        for sg in range(3):
            for tt in range(2):
                acc = vr(ACC + 32*sg + 16*tt, 16)
                x = vr(XB+8*b+4*tt, 4); w = vr(WB+12*b+4*sg, 4)
                if sg < 2: m.append(f"v_mfma_f32_32x32x16_bf16 {acc}, {w}, {x}, {acc}")
                else:      m.append(f"v_mfma_f32_32x32x16_bf16 {acc}, {x}, {w}, {acc}")
        return m
    def step(s, rd, pre=()):
        a("s_waitcnt lgkmcnt(0)")
        for p in pre: a(p)
        m = mfmas(s % 2)
        rd = list(rd)
        for i in range(6):
            a(m[i])
            for _ in range(3):
                if rd: a(rd.pop(0))
    a("s_waitcnt lgkmcnt(0)")
    a("s_barrier")
    for r in reads(0, 0): a(r)
    a(".p2align 3")
    a("K1_LOOP:")
    for s in range(3):
        pre = []
        if s == 0:
            pre = ["s_cmp_eq_u32 s36, 2",
                   "s_cselect_b32 s38, s50, s51",
                   "s_cselect_b32 s36, -1, s36",
                   "s_add_u32 s36, s36, 1",
                   "s_sub_u32 s37, s37, 1",
                   "s_cmp_lg_u32 s37, 0"]
        step(s, reads(s+1, (s+1) % 2), pre)
    pre = ["s_barrier"] + [f"v_add_u32 v{2+i}, s38, v{2+i}" for i in (0, 4)]
    step(3, reads(0, 0) , pre)
    for i in (1, 2, 3): a(f"v_add_u32 v{2+i}, s38, v{2+i}")
    a("s_cbranch_scc1 K1_LOOP")
    for s in range(3): step(s, reads(s+1, (s+1) % 2))
    step(3, [])
    P = 128
    a("s_nop 7")
    for tt in range(2):
        q = ACC + 16*tt
        for i in range(8):
            a(f"v_pk_mul_f32 {vr(q+2*i,2)}, {vr(q+2*i,2)}, s[44:45]")
        for i in range(8):
            a(f"v_cvt_pk_bf16_f32 v{P+8*tt+i}, v{q+2*i}, v{q+2*i+1}")
        a(f"buffer_store_dwordx4 {vr(P+8*tt,4)}, v13, s[12:15], s40 offen offset:{tt*1024}")
        a(f"buffer_store_dwordx4 {vr(P+8*tt+4,4)}, v13, s[12:15], s41 offen offset:{tt*1024}")
    for tt in range(2):
        k = ACC + 32 + 16*tt
        for i in range(8):
            a(f"v_cvt_pk_bf16_f32 v{P+16+8*tt+i}, v{k+2*i}, v{k+2*i+1}")
        a(f"buffer_store_dwordx4 {vr(P+16+8*tt,4)}, v14, s[12:15], s42 offen offset:{tt*2048}")
        a(f"buffer_store_dwordx4 {vr(P+16+8*tt+4,4)}, v14, s[12:15], s43 offen offset:{tt*2048}")
    for tt in range(2):
        v = ACC + 64 + 16*tt
        for i in range(8):
            a(f"v_cvt_pk_bf16_f32 v{P+32+8*tt+i}, v{v+2*i}, v{v+2*i+1}")
        a(f"buffer_store_dwordx4 {vr(P+32+8*tt,4)}, v15, s[12:15], s42 offen offset:{tt*2048}")
        a(f"buffer_store_dwordx4 {vr(P+32+8*tt+4,4)}, v15, s[12:15], s42 offen offset:{tt*2048+512}")
    a("K1_END:")
    a("s_endpgm")
    return name, 176, 176, 3*STAGE, 512

def gen_k2(a):
    name = "attn_kernel"
    kernel_header(a, name)
    a("s_cmp_ge_u32 s2, 256")
    a("s_cbranch_scc1 K2_END")
    a("s_load_dwordx2 s[12:13], s[0:1], 72")
    a("v_lshrrev_b32 v1, 6, v0")
    a("v_and_b32 v0, 63, v0")
    sG, sT, sW = 27, 28, 26
    decode_GT(a, sG, sT, 30)
    a(f"v_readfirstlane_b32 s{sW}, v1")
    a(f"s_mov_b32 s14, {WS_SIZE}")
    a("s_mov_b32 s15, 0x20000")
    a("v_lshlrev_b32 v4, 4, v0")
    a(f"s_lshr_b32 s29, s{sW}, 2")
    a(f"s_and_b32 s{sW}, s{sW}, 3")
    a(f"s_lshl_b32 s30, s{sG}, 1")
    a("s_add_u32 s30, s30, s29")
    a("s_lshl_b32 s31, s30, 6")
    a(f"s_lshl_b32 s32, s{sT}, 3")
    a("s_add_u32 s31, s31, s32")
    a(f"s_lshl_b32 s32, s{sW}, 1")
    a("s_add_u32 s31, s31, s32")
    a("s_lshl_b32 s40, s31, 10")
    a(f"s_add_u32 s41, s40, {WS_O}")
    if WS_Q: a(f"s_add_u32 s40, s40, {WS_Q}")
    a("s_lshl_b32 s42, s30, 17")
    a(f"s_add_u32 s42, s42, {WS_KV}")
    a(f"s_lshl_b32 s32, s{sW}, 12")
    a("s_add_u32 s43, s42, s32")
    a("s_lshl_b32 s44, s29, 14")
    a("s_add_u32 s45, s44, s32")
    Q, KF, VF, S, O = 8, 16, 24, 40, 72
    def dma(sblk):
        a(f"s_lshl_b32 s33, s{sblk}, 14")
        a("s_add_u32 s33, s33, s43")
        for i in range(4):
            a(f"buffer_load_dwordx4 v4, s[12:15], s33 offen offset:{i*1024} lds")
    a("s_waitcnt lgkmcnt(0)")
    a(f"buffer_load_dwordx4 {vr(Q,4)}, v4, s[12:15], s40 offen")
    a(f"buffer_load_dwordx4 {vr(Q+4,4)}, v4, s[12:15], s40 offen offset:1024")
    a("s_mov_b32 m0, s45")
    dma(sT)
    a(f"s_add_u32 s46, s{sT}, 1")
    a("s_and_b32 s46, s46, 7")
    a("s_xor_b32 s45, s45, 0x8000")
    a("s_mov_b32 m0, s45")
    dma(46)
    a("v_add_u32 v2, s44, v4")
    a("v_lshrrev_b32 v5, 5, v0")
    a("v_and_b32 v3, 15, v0")
    a("v_lshlrev_b32 v3, 4, v3")
    a("v_lshl_add_u32 v3, v5, 8, v3")
    a("v_add_u32 v6, 0x400, v3")
    a("v_add_u32 v3, s44, v6")
    a("v_mov_b32 v7, 0xdddddddd")
    for i in range(16): a(f"v_mov_b32 v{VF+i}, 0x3f803f80")
    for i in range(32): a(f"v_mov_b32 v{O+i}, 0")
    for i in range(8): a(f"v_mov_b32 v{S+24+i}, 0")
    a("s_mov_b32 s48, 0x0000ffff")
    a("s_mov_b32 s49, 0x0000ffff")
    a("s_mov_b32 s47, 0")
    def reads(t):
        b = t % 2; t = t % 8
        a("s_mov_b64 exec, s[48:49]")
        a(f"ds_read_b128 {vr(VF+8*b,4)}, v3 offset:{t*2048}")
        a(f"ds_read_b128 {vr(VF+8*b+4,4)}, v3 offset:{t*2048+512}")
        a("s_mov_b64 exec, -1")
        a(f"ds_read_b128 {vr(KF+4*b,4)}, v2 offset:{t*2048}")
    def qk(q, kb):
        a(f"v_mfma_f32_32x32x16_bf16 {vr(S+16*q,16)}, {vr(KF+4*kb,4)}, {vr(Q+4*q,4)}, 0")
    def pv(q, vb, j):
        a(f"v_smfmac_f32_32x32x32_bf16 {vr(O+16*q,16)}, {vr(VF+8*vb+4*j,4)}, {vr(S+16*q+8*j,8)}, v7")
    def ex(q, lo, hi):
        for i in range(lo, hi): a(f"v_exp_f32 v{S+16*q+i}, v{S+16*q+i}")
    a("s_waitcnt vmcnt(4)")
    a("s_barrier")
    reads(0)
    a("s_waitcnt lgkmcnt(0)")
    qk(0, 0)
    a("s_nop 11")
    a(".p2align 3")
    a("K2_LOOP:")
    for t in range(8):
        ex(0, 0, 2)
        pv(1, (t-1) % 2, 1)
        if t == 7:
            a("s_waitcnt vmcnt(0)")
            a("s_barrier")
            a("s_cmp_ge_u32 s47, 6")
            a("s_cbranch_scc1 K2_NODMA")
            a("s_add_u32 s46, s46, 1")
            a("s_and_b32 s46, s46, 7")
            a("s_xor_b32 s45, s45, 0x8000")
            a("s_mov_b32 m0, s45")
            dma(46)
            a("K2_NODMA:")
            a("v_xor_b32 v2, 0x8000, v2")
            a("v_xor_b32 v3, 0x8000, v3")
            a("s_add_u32 s47, s47, 1")
            a("s_cmp_lt_u32 s47, 8")
        reads(t+1)
        ex(0, 2, 5)
        qk(1, t % 2)
        ex(0, 5, 10)
        pv(0, t % 2, 0)
        ex(0, 10, 16)
        ex(1, 0, 2)
        pv(0, t % 2, 1)
        ex(1, 2, 5)
        a("s_waitcnt lgkmcnt(0)")
        qk(0, (t+1) % 2)
        ex(1, 5, 10)
        pv(1, t % 2, 0)
        ex(1, 10, 16)
    a("s_cbranch_scc1 K2_LOOP")
    a("s_nop 1")
    pv(1, 1, 1)
    a("s_nop 15")
    def check_and_flag():
        for q in range(2):
            o = O + 16*q
            a(f"v_add_f32 v{S+q}, v{o}, v{o+1}")
            for i in range(2, 8): a(f"v_add_f32 v{S+q}, v{S+q}, v{o+i}")
        a(f"s_mov_b32 s50, {hex(f2u(2.0**-24))}")
        a(f"s_mov_b32 s51, {hex(f2u(2.0**64))}")
        a("s_movk_i32 s52, 0x207")
        a(f"v_cmp_class_f32 s[54:55], v{S}, s52")
        a(f"v_cmp_class_f32 s[56:57], v{S+1}, s52")
        a(f"v_cmp_nge_f32 s[58:59], v{O+8}, s50")
        a(f"v_cmp_nge_f32 s[60:61], v{O+16+8}, s50")
        a(f"v_cmp_nlt_f32 s[62:63], v{O+8}, s51")
        a(f"v_cmp_nlt_f32 s[64:65], v{O+16+8}, s51")
        a("s_nop 3")
        a("s_or_b64 s[54:55], s[54:55], s[56:57]")
        a("s_or_b64 s[58:59], s[58:59], s[60:61]")
        a("s_or_b64 s[62:63], s[62:63], s[64:65]")
        a("s_or_b64 s[54:55], s[54:55], s[58:59]")
        a("s_or_b64 s[54:55], s[54:55], s[62:63]")
    check_and_flag()
    a("s_cbranch_scc1 K2_SLOW")
    a("K2_STORE:")
    for q in range(2):
        o = O + 16*q
        a(f"v_rcp_f32 v{S+q}, v{o+8}")
    a("s_nop 0")
    for q in range(2):
        o = O + 16*q
        for i in range(8): a(f"v_mul_f32 v{o+i}, v{o+i}, v{S+q}")
        for i in range(4): a(f"v_cvt_pk_bf16_f32 v{S+8+4*q+i}, v{o+2*i}, v{o+2*i+1}")
        a(f"buffer_store_dwordx4 {vr(S+8+4*q,4)}, v4, s[12:15], s41 offen offset:{q*1024}")
    a("K2_END:")
    a("s_endpgm")
    a("K2_SLOW:")
    M = S + 16
    for q in range(2):
        a(f"v_mov_b32 v5, 0xff800000")
        a("s_mov_b32 s33, s42")
        a("s_mov_b32 s47, 64")
        a(f"K2_SM{q}:")
        a(f"buffer_load_dwordx4 {vr(KF,4)}, v4, s[12:15], s33 offen")
        a("s_waitcnt vmcnt(0)")
        a(f"v_mfma_f32_32x32x16_bf16 {vr(S,16)}, {vr(KF,4)}, {vr(Q+4*q,4)}, 0")
        a("s_nop 15")
        for i in range(8): a(f"v_max3_f32 v5, v{S+2*i}, v{S+2*i+1}, v5")
        a("s_add_u32 s33, s33, 2048")
        a("s_sub_u32 s47, s47, 1")
        a("s_cmp_lg_u32 s47, 0")
        a(f"s_cbranch_scc1 K2_SM{q}")
        a("v_mov_b32 v1, v5")
        a("s_nop 1")
        a("v_permlane32_swap_b32 v1, v5")
        a("s_nop 1")
        a("v_max_f32 v5, v1, v5")
        for i in range(16): a(f"v_sub_f32 v{M+i}, 0, v5")
        for i in range(16): a(f"v_mov_b32 v{O+16*q+i}, 0")
        a("s_mov_b32 s33, s42")
        a("s_mov_b32 s47, 64")
        a(f"K2_SP{q}:")
        a(f"buffer_load_dwordx4 {vr(KF,4)}, v4, s[12:15], s33 offen")
        a("s_mov_b64 exec, s[48:49]")
        a(f"buffer_load_dwordx4 {vr(VF,4)}, v6, s[12:15], s33 offen")
        a(f"buffer_load_dwordx4 {vr(VF+4,4)}, v6, s[12:15], s33 offen offset:512")
        a("s_mov_b64 exec, -1")
        a("s_waitcnt vmcnt(0)")
        a(f"v_mfma_f32_32x32x16_bf16 {vr(S,16)}, {vr(KF,4)}, {vr(Q+4*q,4)}, {vr(M,16)}")
        a("s_nop 15")
        for i in range(16): a(f"v_exp_f32 v{S+i}, v{S+i}")
        a("s_nop 1")
        for j in range(2):
            a(f"v_smfmac_f32_32x32x32_bf16 {vr(O+16*q,16)}, {vr(VF+4*j,4)}, {vr(S+8*j,8)}, v7")
        a("s_add_u32 s33, s33, 2048")
        a("s_sub_u32 s47, s47, 1")
        a("s_cmp_lg_u32 s47, 0")
        a("s_nop 15")
        a(f"s_cbranch_scc1 K2_SP{q}")
    a("s_branch K2_STORE")
    return name, 104, 104, 65536, 512

def gen_k3(a):
    name = "oproj_kernel"
    kernel_header(a, name)
    a("s_cmp_ge_u32 s2, 256")
    a("s_cbranch_scc1 K3_END")
    a("s_load_dwordx2 s[20:21], s[0:1], 16")
    a("s_load_dwordx2 s[22:23], s[0:1], 40")
    a("s_load_dwordx2 s[4:5], s[0:1], 56")
    a("s_load_dwordx2 s[12:13], s[0:1], 72")
    a("v_lshrrev_b32 v1, 6, v0")
    a("v_and_b32 v0, 63, v0")
    sTB, sCB, sW = 27, 28, 26
    a("s_and_b32 s30, s2, 7")
    a("s_lshr_b32 s31, s2, 3")
    a(f"v_readfirstlane_b32 s{sW}, v1")
    a(f"s_and_b32 s{sCB}, s31, 7")
    a("s_lshr_b32 s31, s31, 3")
    a("s_lshl_b32 s30, s30, 2")
    a(f"s_add_u32 s{sTB}, s30, s31")
    a("s_mov_b32 s6, 0x200000")
    a("s_mov_b32 s7, 0x20000")
    a("s_mov_b32 s10, 0x80000")
    a("s_mov_b32 s11, 0x20000")
    a(f"s_mov_b32 s14, {WS_SIZE}")
    a("s_mov_b32 s15, 0x20000")
    a("v_lshrrev_b32 v2, 3, v0")
    a("v_lshlrev_b32 v2, 10, v2")
    a("v_lshrrev_b32 v3, 2, v0")
    a("v_and_b32 v3, 4, v3")
    a("v_xor_b32 v3, v3, v0")
    a("v_and_b32 v3, 7, v3")
    a("v_lshl_add_u32 v2, v3, 4, v2")
    a(f"s_and_b32 s30, s{sW}, 1")
    a("s_lshl_b32 s30, s30, 18")
    a(f"s_lshl_b32 s31, s{sCB}, 7")
    a("s_add_u32 s30, s30, s31")
    a("v_add_u32 v2, s30, v2")
    a("v_lshlrev_b32 v4, 4, v0")
    a(f"s_lshl_b32 s32, s{sW}, 15")
    a(f"s_lshl_b32 s33, s{sW}, 20")
    a(f"s_lshl_b32 s31, s{sTB}, 11")
    a("s_add_u32 s33, s33, s31")
    a(f"s_add_u32 s33, s33, {WS_O}")
    a(f"s_lshl_b32 s31, s{sTB}, 8")
    a(f"s_add_u32 s36, s31, {WS_G}")
    a("v_and_b32 v8, 31, v0")
    a("v_lshlrev_b32 v5, 2, v8")
    a(f"s_cmp_lt_u32 s{sW}, 2")
    a("s_waitcnt lgkmcnt(0)")
    a("s_cselect_b32 s8, s20, s22")
    a("s_cselect_b32 s9, s21, s23")
    ACC, OF, WF = 16, 80, 208
    a("buffer_load_dword v6, v5, s[12:15], s36 offen")
    a("buffer_load_dword v7, v5, s[12:15], s36 offen offset:128")
    for i in range(16):
        for p in (2*i, 2*i+1):
            a(f"s_add_u32 m0, s32, {p*1024}")
            a(f"s_mov_b32 s34, {p*8192}")
            a("buffer_load_dwordx4 v2, s[8:11], s34 offen lds")
        a(f"s_add_u32 s34, s33, {i*65536}")
        for tt in range(2):
            a(f"buffer_load_dwordx4 {vr(OF+8*i+4*tt,4)}, v4, s[12:15], s34 offen offset:{tt*1024}")
        if i == 14:
            a("s_waitcnt vmcnt(56)")
    a("v_lshrrev_b32 v9, 5, v0")
    a("v_bfe_u32 v10, v0, 2, 2")
    a("v_lshl_add_u32 v10, v9, 2, v10")
    a("v_lshlrev_b32 v10, 7, v10")
    a("v_bfe_u32 v11, v0, 4, 1")
    a("v_lshlrev_b32 v11, 1, v11")
    a("v_and_b32 v12, 1, v0")
    a("v_or_b32 v11, v11, v12")
    a("v_bfe_u32 v12, v0, 3, 1")
    a("v_lshl_or_b32 v11, v12, 2, v11")
    a("v_lshl_add_u32 v10, v11, 4, v10")
    a("v_bfe_u32 v12, v0, 1, 1")
    a("v_lshl_add_u32 v10, v12, 3, v10")
    a("v_add_u32 v10, s32, v10")
    a("v_xor_b32 v11, 64, v10")
    for i in range(64): a(f"v_mov_b32 v{ACC+i}, 0")
    def reads(i):
        b = i % 2
        for ct in range(2):
            for i2 in range(2):
                a(f"ds_read_b64_tr_b16 {vr(WF+8*b+4*ct+2*i2,2)}, v{10+ct} offset:{(2*i+i2)*1024}")
    a("s_waitcnt vmcnt(60)")
    reads(0)
    for i in range(16):
        if i < 15:
            a(f"s_waitcnt vmcnt({4*(14-i)})")
            reads(i+1)
            a("s_waitcnt lgkmcnt(4)")
        else:
            a("s_waitcnt lgkmcnt(0)")
        for ct in range(2):
            for tt in range(2):
                acc = vr(ACC+32*ct+16*tt, 16)
                a(f"v_mfma_f32_32x32x16_bf16 {acc}, {vr(WF+8*(i%2)+4*ct,4)}, {vr(OF+8*i+4*tt,4)}, {acc}")
    a(f"s_cmp_lt_u32 s{sW}, 2")
    a("s_cbranch_scc1 K3_GA")
    a("v_sub_f32 v6, 1.0, v6")
    a("v_sub_f32 v7, 1.0, v7")
    a("K3_GA:")
    a("s_nop 15")
    for ct in range(2):
        for tt in range(2):
            for i in range(16):
                r = ACC+32*ct+16*tt+i
                a(f"v_mul_f32 v{r}, v{r}, v{6+tt}")
    a("v_add_u32 v12, s32, v4")
    for qd in range(4):
        for i in range(4):
            a(f"ds_write_b128 v12, {vr(ACC+16*qd+4*i,4)} offset:{qd*4096+i*1024}")
    a(f"s_lshl_b32 s34, s{sW}, 12")
    a("v_add_u32 v12, s34, v4")
    a("v_add_u32 v13, 0x10000, v12")
    a(f"s_and_b32 s30, s{sW}, 1")
    a("s_lshl_b32 s30, s30, 5")
    a(f"s_lshl_b32 s31, s{sTB}, 6")
    a("s_add_u32 s30, s30, s31")
    a("v_add_u32 v14, s30, v8")
    a("v_lshlrev_b32 v14, 10, v14")
    a("v_lshl_add_u32 v14, v9, 4, v14")
    a(f"s_lshr_b32 s30, s{sW}, 1")
    a("s_lshl_b32 s30, s30, 6")
    a(f"s_lshl_b32 s31, s{sCB}, 7")
    a("s_add_u32 s30, s30, s31")
    a("s_waitcnt lgkmcnt(0)")
    a("s_barrier")
    for w in range(4):
        for i in range(4):
            a(f"ds_read_b128 {vr(ACC+16*w+4*i,4)}, v{12+(w>>1)} offset:{(w&1)*32768+i*1024}")
    a("s_waitcnt lgkmcnt(8)")
    for i in range(16): a(f"v_add_f32 v{ACC+i}, v{ACC+i}, v{ACC+16+i}")
    a("s_waitcnt lgkmcnt(0)")
    for i in range(16): a(f"v_add_f32 v{ACC+32+i}, v{ACC+32+i}, v{ACC+48+i}")
    for i in range(16): a(f"v_add_f32 v{ACC+i}, v{ACC+i}, v{ACC+32+i}")
    for i in range(8): a(f"v_cvt_pk_bf16_f32 v{OF+i}, v{ACC+2*i}, v{ACC+2*i+1}")
    a(f"buffer_store_dwordx4 {vr(OF,4)}, v14, s[4:7], s30 offen")
    a(f"buffer_store_dwordx4 {vr(OF+4,4)}, v14, s[4:7], s30 offen offset:32")
    a("K3_END:")
    a("s_endpgm")
    return name, 224, 224, 131072, 256

def build():
    body = Asm()
    ks = []
    descs = Asm()
    for g in (gen_k1, gen_k2, gen_k3):
        name, nv, acc, lds, blk = g(body)
        ks.append((name, lds, blk))
        kernel_desc(descs, name, nv, acc)
    head = HEADER
    for name, lds, blk in ks:
        head += f"; @launch kernel={name} grid=(256,1,1) block=({blk},1,1) lds={lds}\n"
    return head + '.amdgcn_target "amdgcn-amd-amdhsa--gfx950"\n' + body.text() + descs.text()

if __name__ == "__main__":
    out = sys.argv[1] if len(sys.argv) > 1 else 'gated_mix__softmax_full_mha__mha_block__prompt.s'
    open(out, 'w').write(build())
```

```python
import sys, struct, os, math
sys.path.insert(0, 'gen')
from asmlib import *

def f2u(x): return struct.unpack("<I", struct.pack("<f", x))[0]
QSCALE = f2u(0.25 * math.log2(math.e))
LOG2E = f2u(math.log2(math.e))
HEADER = open('gated_mix__softmax_full_mha__mha_block__prompt.s.ref').read().split("; Override launch")[0]
NAME = "gated_mix__softmax_full_mha__mha_block__prompt_kernel"
E = os.environ.get

WS_KV, WS_O, WS_CNT = 4 << 20, 12 << 20, 16 << 20
WS_GC = WS_CNT + 8192
WS_G = WS_CNT + 16384
WS_SIZE = WS_G + 8192
DIAG = int(E("DIAG", "0"))
WS_DIAG = 32 << 20
if DIAG: WS_SIZE = 48 << 20
X = E("XP", "")
PRIO = [int(x) for x in E("PRIO", "0,7,11,13").split(",")] if E("PRIO", "x") != "" else []
SPIN = 1 << 20

STAGE = 45056
SLOT1 = 0x18000
L_QX = 135168
LDS_BYTES = 163840

SX, SWQ, SWS, SGATE, SDBG, SOUT, SWO = 4, 8, 12, 16, 20, 24, 28
P_AX, P_AWQ, P_AWO, P_BWQ, P_BWO, P_GATE, P_OUT, P_DBG, P_WS = 36, 38, 40, 44, 46, 48, 50, 52, 54
sW, sG, sT, sR = 56, 57, 58, 59
t0, t1, t2, t3, t4 = 60, 61, 62, 63, 64
sCNT = 65
sEXV = 66
sHd, sWq = 68, 69
sA, sB, sC, sD, sE, sF, sKq, sMask = 94, 95, 96, 97, 98, 99, 100, 101
NST = 12
SSET = E("SSET", "none")
def st(a, sset, i):
    if DIAG and SSET == sset:
        a(f"{'s_memrealtime' if DIAG == 2 else 's_memtime'} s[{70+2*i}:{71+2*i}]")
def diag_store(a):
    if not DIAG: return
    a("s_mov_b64 exec, -1")
    a("s_waitcnt vmcnt(0) lgkmcnt(0)")
    a(f"s_memtime s[{70+2*10}:{71+2*10}]")
    a(f"s_memrealtime s[{70+2*11}:{71+2*11}]")
    a("s_waitcnt lgkmcnt(0)")
    a(f"s_lshl_b32 s{t0}, s2, 3")
    a(f"s_add_u32 s{t0}, s{t0}, s{sW}")
    a(f"s_lshl_b32 s{t0}, s{t0}, 6")
    a(f"s_add_u32 s{t0}, s{t0}, {WS_DIAG}")
    a("v_mov_b32 v1, 0")
    for i in range(NST):
        a(f"v_mov_b32 v2, s{70+2*i}")
        a(f"buffer_store_dword v2, v1, {sr(SWS,4)}, s{t0} offen offset:{4*i}")
        a("s_nop 0")
def diag_init(a):
    if not DIAG: return
    a("s_memtime s[70:71]")
    a("s_memrealtime s[72:73]")
    for i in range(2, NST): a(f"s_mov_b64 s[{70+2*i}:{71+2*i}], 0")

def srd(a, q, ptr, size):
    a(f"s_mov_b32 s{q}, s{ptr}")
    a(f"s_mov_b32 s{q+1}, s{ptr+1}")
    a(f"s_mov_b32 s{q+2}, {hex(size)}")
    a(f"s_mov_b32 s{q+3}, 0x20000")
def srd_wq(a):
    a(f"s_cmp_lt_u32 s{sG}, 16")
    a(f"s_cselect_b32 s{SWQ}, s{P_AWQ}, s{P_BWQ}")
    a(f"s_cselect_b32 s{SWQ+1}, s{P_AWQ+1}, s{P_BWQ+1}")
    a(f"s_mov_b32 s{SWQ+2}, 0x180000")
    a(f"s_mov_b32 s{SWQ+3}, 0x20000")

vK, vV, vL16, vTmp, vVg, vIDX = 2, 3, 4, 5, 6, 7
Q, KF = 8, 32
VF, S, O = 176, 192, 224
vWS, vZ, vONE, vGZ = 28, 29, 30, 168
vTm2 = 31

def attn_init(a, tmp):
    a(f"s_lshl_b32 s{t0}, s{sHd}, 14")
    a(f"v_add_u32 v{vK}, s{t0}, v{vL16}")
    a(f"v_lshrrev_b32 v{tmp}, 5, v0")
    a(f"v_and_b32 v{vV}, 15, v0")
    a(f"v_lshlrev_b32 v{vV}, 4, v{vV}")
    a(f"v_lshl_add_u32 v{vV}, v{tmp}, 8, v{vV}")
    a(f"v_add_u32 v{vVg}, 0x400, v{vV}")
    a(f"v_add_u32 v{vV}, s{t0}, v{vVg}")
    a(f"v_mov_b32 v{vIDX}, 0xdddddddd")
    a(f"v_and_b32 v{tmp}, 27, v0")
    a(f"v_cmp_eq_u32 vcc, 16, v{tmp}")
    a(f"v_mov_b32 v{tmp}, 0x3f803f80")
    a(f"v_mov_b32 v{vZ}, 0")
    a(f"v_cndmask_b32 v{VF}, 0, v{tmp}, vcc")
    for i in range(1, 16): a(f"v_mov_b32 v{VF+i}, v{VF}")
    for i in range(32): a(f"v_mov_b32 v{O+i}, 0")
    for i in range(8): a(f"v_mov_b32 v{S+24+i}, 0")
    a(f"v_mov_b32 v{vONE}, 1")
    a(f"s_mov_b32 s{sEXV}, 0x0000ffff")
    a(f"s_mov_b32 s{sEXV+1}, 0x0000ffff")
    a(f"v_lshrrev_b32 v{vWS}, 3, v0")
    a(f"v_lshlrev_b32 v{vWS}, 10, v{vWS}")
    a(f"v_lshrrev_b32 v{tmp}, 2, v0")
    a(f"v_and_b32 v{tmp}, 4, v{tmp}")
    a(f"v_xor_b32 v{tmp}, v{tmp}, v0")
    a(f"v_and_b32 v{tmp}, 7, v{tmp}")
    a(f"v_lshl_add_u32 v{vWS}, v{tmp}, 4, v{vWS}")
    a(f"s_and_b32 s{t0}, s{sG}, 7")
    a(f"s_lshl_b32 s{t0}, s{t0}, 7")
    a(f"v_add_u32 v{vWS}, s{t0}, v{vWS}")

def poll(a, label, vreg, srdq, soff, cmpop, target, vaddr=None, lanes=None):
    vaddr = vZ if vaddr is None else vaddr
    a(f"s_mov_b32 s{sCNT}, {SPIN}")
    a(f"{label}_P:")
    a("s_waitcnt vmcnt(0)")
    if lanes is None:
        a(f"v_readfirstlane_b32 s{t4}, v{vreg}")
        a(f"s_sub_u32 s{sCNT}, s{sCNT}, 1")
        a(f"s_cbranch_scc1 {label}_OK")
        a(f"{cmpop} s{t4}, {target}")
        a(f"s_cbranch_scc1 {label}_OK")
    else:
        a(f"v_cmp_gt_u32 vcc, {target}, v{vreg}")
        a(f"s_sub_u32 s{sCNT}, s{sCNT}, 1")
        a(f"s_cbranch_scc1 {label}_OK")
        a(f"s_and_b64 vcc, vcc, {lanes}")
        a(f"s_cbranch_scc0 {label}_OK")
    a("s_sleep 2")
    a(f"buffer_load_dword v{vreg}, v{vaddr}, {sr(srdq,4)}, {soff} offen sc1")
    a(f"s_branch {label}_P")
    a(f"{label}_OK:")

def gen(a):
    kernel_header(a, NAME)
    a("s_cmp_ge_u32 s2, 256")
    a("s_cbranch_scc1 L_END")
    a("s_load_dwordx16 s[36:51], s[0:1], 0")
    a("s_load_dwordx4 s[52:55], s[0:1], 64")
    diag_init(a)
    a("v_lshrrev_b32 v1, 6, v0")
    a("v_and_b32 v0, 63, v0")
    a(f"s_and_b32 s{t0}, s2, 7")
    a(f"v_readfirstlane_b32 s{sW}, v1")
    a(f"s_lshr_b32 s{t1}, s2, 3")
    a(f"s_and_b32 s{sT}, s{t1}, 7")
    a(f"s_lshr_b32 s{t1}, s{t1}, 3")
    a(f"s_lshl_b32 s{t0}, s{t0}, 2")
    a(f"s_add_u32 s{sG}, s{t0}, s{t1}")
    a(f"s_and_b32 s{sWq}, s{sW}, 3")
    a(f"s_lshr_b32 s{sHd}, s{sW}, 2")
    a("s_cbranch_scc0 L_COMPUTE")
    a(f"s_lshl_b32 s{t0}, s{sT}, 2")
    a(f"s_add_u32 s{t0}, s{t0}, s{sWq}")
    a(f"s_lshl_b32 s{t0}, s{t0}, 16")
    a("v_lshrrev_b32 v1, 3, v0")
    a(f"v_lshl_add_u32 v1, v1, 10, s{t0}")
    a("v_lshrrev_b32 v2, 4, v0")
    a("v_xor_b32 v2, v2, v0")
    a("v_and_b32 v2, 7, v2")
    a("v_lshl_add_u32 v8, v2, 4, v1")
    a("v_xor_b32 v9, 64, v8")
    a("v_add_u32 v9, 0x2000, v9")
    a("v_lshrrev_b32 v10, 2, v0")
    a("v_mul_u32_u24 v10, 0xc00, v10")
    a("v_and_b32 v5, 3, v0")
    a("v_lshl_add_u32 v10, v5, 4, v10")
    a(f"s_mul_i32 s{t1}, s{sWq}, 0xc000")
    a(f"s_and_b32 s{t2}, s{sG}, 15")
    a(f"s_lshl_b32 s{t2}, s{t2}, 6")
    a(f"s_add_u32 s{t1}, s{t1}, s{t2}")
    a(f"v_add_u32 v10, s{t1}, v10")
    a(f"s_lshl_b32 s{sA}, s{sWq}, 13")
    a(f"s_lshl_b32 s{sB}, s{sWq}, 10")
    a(f"s_add_u32 s{sB}, s{sB}, 0x8000")
    a(f"s_mov_b32 s{SX+2}, 0x200000")
    a(f"s_mov_b32 s{SX+3}, 0x20000")
    a(f"s_mov_b32 s{SWQ+2}, 0x180000")
    a(f"s_mov_b32 s{SWQ+3}, 0x20000")
    a(f"s_cmp_lt_u32 s{sG}, 16")
    a("s_waitcnt lgkmcnt(0)")
    a(f"s_cselect_b32 s{SWQ}, s{P_AWQ}, s{P_BWQ}")
    a(f"s_cselect_b32 s{SWQ+1}, s{P_AWQ+1}, s{P_BWQ+1}")
    a(f"s_mov_b32 s{SX}, s{P_AX}")
    a(f"s_mov_b32 s{SX+1}, s{P_AX+1}")
    st(a, "p1", 2)
    def issue(c):
        stg = (c % 3) * STAGE
        for sg in range(3):
            a(f"s_add_u32 m0, s{sB}, {stg + sg*4096}")
            a(f"s_mov_b32 s{t0}, {c*64*3072 + sg*1024}")
            a(f"buffer_load_dwordx4 v10, {sr(SWQ,4)}, s{t0} offen lds")
        for i in range(8):
            a(f"s_add_u32 m0, s{sA}, {stg + i*1024}")
            a(f"s_mov_b32 s{t0}, {(i & ~1)*8192 + c*128}")
            a(f"buffer_load_dwordx4 v{8 + (i & 1)}, {sr(SX,4)}, s{t0} offen lds")
    issue(0)
    issue(1)
    st(a, "p1", 3)
    a(f"v_lshlrev_b32 v{vL16}, 4, v0")
    srd(a, SGATE, P_GATE, 1024)
    srd(a, SWS, P_WS, WS_SIZE)
    srd(a, SDBG, P_DBG, 256)
    attn_init(a, vTmp)
    a(f"s_lshl_b32 s{t0}, s2, 3")
    a(f"s_add_u32 s{sE}, s{t0}, s{sW}")
    a(f"s_cmp_lg_u32 s{sE}, 4")
    a("s_cbranch_scc1 L_NOCLR")
    a("v_lshlrev_b32 v14, 8, v0")
    a(f"s_mov_b32 s{t0}, {WS_CNT}")
    a(f"buffer_store_dword v{vZ}, v14, {sr(SWS,4)}, s{t0} offen sc1")
    a("L_NOCLR:")
    for c in range(8):
        n = {6: 15, 7: 4}.get(c, 11)
        a(f"s_waitcnt vmcnt({n})")
        if c == 1:
            a(f"s_cmp_lg_u32 s{sE}, 4")
            a("s_cbranch_scc1 L_NOPUB")
            a("s_mov_b64 exec, 1")
            a(f"buffer_store_dword v{vONE}, v{vZ}, {sr(SDBG,4)}, 0 offen sc1")
            a("s_mov_b64 exec, -1")
            a("L_NOPUB:")
        a("s_barrier")
        if c in (0, 1, 2, 4, 6, 7): st(a, "p1", {0: 4, 1: 5, 2: 6, 4: 7, 6: 8, 7: 9}[c])
        if c <= 5:
            issue(c + 2)
        if c == 5:
            a(f"s_lshl_b32 s{sC}, s{sT}, 8")
            a(f"s_lshl_b32 s{t0}, s{sG}, 3")
            a(f"s_add_u32 s{sC}, s{sC}, s{t0}")
            a(f"s_lshl_b32 s{t0}, s{sWq}, 1")
            a(f"s_add_u32 s{sC}, s{sC}, s{t0}")
            a(f"s_lshl_b32 s{t0}, s{sC}, 10")
            a(f"buffer_load_dwordx4 v[16:19], v{vL16}, {sr(SX,4)}, s{t0} offen")
            a(f"buffer_load_dwordx4 v[20:23], v{vL16}, {sr(SX,4)}, s{t0} offen offset:1024")
            a(f"buffer_load_dwordx4 v[24:27], v{vL16}, {sr(SGATE,4)}, 0 offen")
            a(f"buffer_load_dword v14, v{vZ}, {sr(SDBG,4)}, 0 offen sc1")
    for i in range(4): a(f"v_mov_b32 v{40+i}, -1")
    a(f"s_lshl_b32 s{t0}, s{sG}, 1")
    a(f"s_lshr_b32 s{t1}, s{sWq}, 1")
    a(f"s_add_u32 s{t0}, s{t0}, s{t1}")
    a(f"s_lshl_b32 s{t0}, s{t0}, 4")
    a(f"s_lshl_b32 s{t1}, s{sT}, 1")
    a(f"s_add_u32 s{t0}, s{t0}, s{t1}")
    a(f"s_and_b32 s{t1}, s{sWq}, 1")
    a(f"s_add_u32 s{t0}, s{t0}, s{t1}")
    a(f"s_lshl_b32 s{t0}, s{t0}, 12")
    a(f"s_add_u32 s{t0}, s{t0}, {WS_O}")
    for i in range(4):
        a(f"buffer_store_dwordx4 v[40:43], v{vL16}, {sr(SWS,4)}, s{t0} offen offset:{i*1024} sc1")
    a("s_waitcnt vmcnt(4)")
    a("v_mov_b32 v12, 0")
    a("v_mov_b32 v13, 0")
    a("s_nop 1")
    for i in range(4):
        a(f"v_dot2_f32_bf16 v12, v{16+i}, v{24+i}, v12")
        a(f"v_dot2_f32_bf16 v13, v{20+i}, v{24+i}, v13")
    a("s_nop 3")
    for r in (8, 4, 2, 1):
        a(f"v_add_f32_dpp v12, v12, v12 row_ror:{r} row_mask:0xf bank_mask:0xf")
        a(f"v_add_f32_dpp v13, v13, v13 row_ror:{r} row_mask:0xf bank_mask:0xf")
        a("s_nop 1")
    for op in ("v_permlane16_swap_b32", "v_permlane32_swap_b32"):
        a("v_mov_b32 v16, v12")
        a("v_mov_b32 v17, v13")
        a("s_nop 1")
        a(f"{op} v16, v12")
        a(f"{op} v17, v13")
        a("s_nop 1")
        a("v_add_f32 v12, v12, v16")
        a("v_add_f32 v13, v13, v17")
    a(f"s_lshl_b32 s{t0}, s{sC}, 2")
    a(f"s_add_u32 s{t0}, s{t0}, {WS_G}")
    a("s_mov_b64 exec, 1")
    a(f"buffer_store_dwordx2 v[12:13], v{vZ}, {sr(SWS,4)}, s{t0} offen sc1")
    a("s_mov_b64 exec, -1")
    a(f"v_readfirstlane_b32 s{t4}, v14")
    a(f"s_cmp_eq_u32 s{t4}, 1")
    a("s_cbranch_scc1 L_DBG_OK")
    poll(a, "L_DBG", 14, SDBG, 0, "s_cmp_eq_u32", 1)
    a(f"s_lshl_b32 s{t0}, s{sWq}, 11")
    a(f"s_add_u32 s{t0}, s{t0}, {L_QX}")
    a(f"v_add_u32 v{vTmp}, s{t0}, v{vL16}")
    a("s_barrier")
    a(f"ds_read_b128 {vr(Q,4)}, v{vTmp}")
    a(f"ds_read_b128 {vr(Q+4,4)}, v{vTmp} offset:1024")
    a("s_branch L_ATTN")
    a(".p2align 6")
    a("L_COMPUTE:")
    ACC, XB, WB = 32, 128, 144
    vXA, vWA = 16, 20
    vKG, vVG, vKL, vVL = 24, 25, 26, 27
    a(f"v_lshlrev_b32 v{vL16}, 4, v0")
    a("v_and_b32 v8, 31, v0")
    a("v_lshrrev_b32 v9, 5, v0")
    a(f"s_lshl_b32 s{t0}, s{sW}, 6")
    a(f"v_add_u32 v10, s{t0}, v8")
    a("v_lshlrev_b32 v10, 7, v10")
    a("v_bfe_u32 v11, v8, 1, 3")
    a("v_xor_b32 v11, v11, v9")
    for s in range(4):
        a(f"v_xor_b32 v12, {2*s}, v11")
        a(f"v_lshl_add_u32 v{vXA+s}, v12, 4, v10")
    a("v_bfe_u32 v11, v0, 2, 2")
    a("v_lshl_add_u32 v11, v9, 3, v11")
    a("v_lshlrev_b32 v11, 6, v11")
    a("v_bfe_u32 v12, v0, 4, 1")
    a("v_lshl_add_u32 v11, v12, 5, v11")
    a("v_and_b32 v12, 3, v0")
    a("v_lshl_add_u32 v11, v12, 3, v11")
    a(f"v_add_u32 v{vWA}, 0x8000, v11")
    a("v_bfe_u32 v11, v8, 2, 1")
    a("v_bfe_u32 v12, v8, 3, 1")
    a(f"v_and_b32 v{vKG}, 19, v8")
    a(f"v_lshl_or_b32 v{vKG}, v11, 3, v{vKG}")
    a(f"v_lshl_or_b32 v{vKG}, v12, 2, v{vKG}")
    a(f"v_lshlrev_b32 v{vKG}, 4, v{vKG}")
    a(f"v_lshl_add_u32 v{vKG}, v9, 9, v{vKG}")
    a("v_and_b32 v12, 15, v8")
    a("v_lshlrev_b32 v12, 4, v12")
    a("v_lshl_add_u32 v12, v9, 8, v12")
    a("v_add_u32 v12, 0x400, v12")
    a("v_lshrrev_b32 v11, 4, v8")
    a(f"v_lshl_add_u32 v{vVG}, v11, 17, v12")
    a(f"v_lshl_add_u32 v{vVL}, v11, 14, v12")
    a(f"s_lshl_b32 s{t0}, s{sW}, 12")
    a(f"v_add_u32 v{vVL}, s{t0}, v{vVL}")
    a(f"v_add_u32 v{vKL}, s{t0}, v{vKG}")
    attn_init(a, vTmp)
    for i in range(96):
        a(f"v_mov_b32 v{ACC+i}, 0")
    a(f"s_mov_b32 s{sC}, {hex(QSCALE)}")
    a(f"s_mov_b32 s{sD}, {hex(QSCALE)}")
    a(f"s_mov_b32 s{sE}, {-2*STAGE & 0xffffffff}")
    a(f"s_mov_b32 s{sF}, {STAGE}")
    a(f"s_mov_b32 s{t2}, 0")
    a(f"s_mov_b32 s{t3}, 7")
    a("s_waitcnt lgkmcnt(0)")
    srd(a, SWS, P_WS, WS_SIZE)
    if "nopf" not in X:
        srd(a, SX, P_AX, 0x200000)
        srd_wq(a)
        a(f"s_and_b32 s{t0}, s{sG}, 3")
        a(f"s_lshl_b32 s{t1}, s{sT}, 2")
        a(f"s_add_u32 s{t0}, s{t0}, s{t1}")
        a(f"s_lshl_b32 s{t0}, s{t0}, 16")
        a(f"v_lshl_add_u32 v10, v0, 10, s{t0}")
        a(f"s_lshl_b32 s{t0}, s{sW}, 7")
        a(f"s_add_u32 s{t0}, s{t0}, {3*128}")
        a(f"buffer_load_dword v170, v10, {sr(SX,4)}, s{t0} offen")
        a(f"s_cmp_lg_u32 s{sW}, 0")
        a("s_cbranch_scc1 L_NOPF")
        a(f"s_mov_b32 s{t0}, {7*128}")
        a(f"buffer_load_dword v171, v10, {sr(SX,4)}, s{t0} offen")
        a(f"s_and_b32 s{t0}, s{sG}, 1")
        a(f"s_lshl_b32 s{t0}, s{t0}, 3")
        a(f"s_add_u32 s{t0}, s{t0}, s{sT}")
        a(f"s_mul_i32 s{t0}, s{t0}, 20")
        a(f"s_add_u32 s{t0}, s{t0}, 192")
        a("v_mul_u32_u24 v11, 0x5556, v0")
        a("v_lshrrev_b32 v11, 16, v11")
        a("v_mul_u32_u24 v12, 3, v11")
        a("v_sub_u32 v12, v0, v12")
        a(f"v_add_u32 v11, s{t0}, v11")
        a("v_mul_u32_u24 v11, 0xc00, v11")
        a("v_lshl_add_u32 v11, v12, 10, v11")
        a(f"s_and_b32 s{t0}, s{sG}, 14")
        a(f"s_lshl_b32 s{t0}, s{t0}, 6")
        a(f"buffer_load_dword v172, v11, {sr(SWQ,4)}, s{t0} offen")
        a("L_NOPF:")
    a(f"s_lshl_b32 s{t0}, s{sG}, 7")
    a(f"s_lshl_b32 s{t1}, s{sT}, 3")
    a(f"s_add_u32 s{t0}, s{t0}, s{t1}")
    a(f"s_lshl_b32 s{t1}, s{sW}, 1")
    a(f"s_add_u32 s{t0}, s{t0}, s{t1}")
    a(f"s_lshl_b32 s{sA}, s{t0}, 11")
    a(f"s_add_u32 s{sA}, s{sA}, {WS_KV}")
    a(f"s_add_u32 s{sB}, s{sA}, 0x20000")
    def reads(s, b):
        r = []
        for tt in range(2):
            r.append(f"ds_read_b128 {vr(XB+8*b+4*tt, 4)}, v{vXA+s} offset:{tt*4096}")
        for sg in (1, 2, 0):
            for i in range(2):
                r.append(f"ds_read_b64_tr_b16 {vr(WB+12*b+4*sg+2*i, 2)}, v{vWA} offset:{(sg*4+s)*1024 + i*256}")
        return r
    def mfmas(b):
        m = []
        for sg in (1, 2, 0):
            for tt in range(2):
                acc = vr(ACC + 32*sg + 16*tt, 16)
                x = vr(XB+8*b+4*tt, 4); w = vr(WB+12*b+4*sg, 4)
                if sg < 2: m.append(f"v_mfma_f32_32x32x16_bf16 {acc}, {w}, {x}, {acc}")
                else:      m.append(f"v_mfma_f32_32x32x16_bf16 {acc}, {x}, {w}, {acc}")
        return m
    def step(s, rd, pre=()):
        a("s_waitcnt lgkmcnt(0)")
        for p in pre: a(p)
        m = mfmas(s % 2)
        rd = list(rd)
        nrd = [3, 3, 2, 0, 0, 0]
        for i in range(6):
            a(m[i])
            for _ in range(nrd[i]):
                if rd: a(rd.pop(0))
    st(a, "p1", 2)
    a("s_barrier")
    st(a, "p1", 3)
    for r in reads(0, 0): a(r)
    a(".p2align 3")
    a("L_GLOOP:")
    for s in range(3):
        pre = []
        if s == 0:
            pre = [f"s_cmp_eq_u32 s{t2}, 2",
                   f"s_cselect_b32 s{t4}, s{sE}, s{sF}",
                   f"s_cselect_b32 s{t2}, -1, s{t2}",
                   f"s_add_u32 s{t2}, s{t2}, 1",
                   f"s_sub_u32 s{t3}, s{t3}, 1",
                   f"s_cmp_lg_u32 s{t3}, 0"]
        step(s, reads(s+1, (s+1) % 2), pre)
    pre = ["s_barrier", f"v_add_u32 v{vXA}, s{t4}, v{vXA}", f"v_add_u32 v{vWA}, s{t4}, v{vWA}"]
    step(3, reads(0, 0), pre)
    for i in (1, 2, 3): a(f"v_add_u32 v{vXA+i}, s{t4}, v{vXA+i}")
    a("s_cbranch_scc1 L_GLOOP")
    for s in range(3): step(s, reads(s+1, (s+1) % 2))
    step(3, [])
    st(a, "p1", 4)
    P = 128
    a(f"s_lshl_b32 s{t0}, s{sW}, 11")
    a(f"s_add_u32 s{t0}, s{t0}, {L_QX}")
    a(f"v_add_u32 v1, s{t0}, v{vL16}")
    a("s_nop 3")
    for tt in range(2):
        k = ACC + 32 + 16*tt
        for i in range(8):
            a(f"v_cvt_pk_bf16_f32 v{P+8*tt+i}, v{k+2*i}, v{k+2*i+1}")
        a(f"ds_write_b128 v{vKL}, {vr(P+8*tt,4)} offset:{tt*2048}")
        a(f"ds_write_b128 v{vKL}, {vr(P+8*tt+4,4)} offset:{tt*2048+16384}")
    for tt in range(2):
        v = ACC + 64 + 16*tt
        for i in range(8):
            a(f"v_cvt_pk_bf16_f32 v{P+16+8*tt+i}, v{v+2*i}, v{v+2*i+1}")
        a(f"ds_write_b128 v{vVL}, {vr(P+16+8*tt,4)} offset:{tt*2048}")
        a(f"ds_write_b128 v{vVL}, {vr(P+16+8*tt+4,4)} offset:{tt*2048+512}")
    for tt in range(2):
        q = ACC + 16*tt
        for i in range(4, 8):
            a(f"v_pk_mul_f32 {vr(q+2*i,2)}, {vr(q+2*i,2)}, s[{sC}:{sD}]")
        for i in range(4):
            a(f"v_cvt_pk_bf16_f32 v{P+32+4*tt+i}, v{q+8+2*i}, v{q+8+2*i+1}")
        a(f"ds_write_b128 v1, {vr(P+32+4*tt,4)} offset:{tt*1024}")
    for tt in range(2):
        q = ACC + 16*tt
        for i in range(4):
            a(f"v_pk_mul_f32 {vr(q+2*i,2)}, {vr(q+2*i,2)}, s[{sC}:{sD}]")
        for i in range(4):
            a(f"v_cvt_pk_bf16_f32 v{Q+4*tt+i}, v{q+2*i}, v{q+2*i+1}")
    st(a, "p1", 5)
    a("s_waitcnt lgkmcnt(0)")
    st(a, "p1", 6)
    a("s_barrier")
    st(a, "p1", 7)
    kvst = []
    for tt in range(2):
        kvst.append(f"buffer_store_dwordx4 {vr(P+8*tt,4)}, v{vKG}, {sr(SWS,4)}, s{sA} offen offset:{tt*2048} sc1")
        kvst.append(f"buffer_store_dwordx4 {vr(P+8*tt+4,4)}, v{vKG}, {sr(SWS,4)}, s{sB} offen offset:{tt*2048} sc1")
        kvst.append(f"buffer_store_dwordx4 {vr(P+16+8*tt,4)}, v{vVG}, {sr(SWS,4)}, s{sA} offen offset:{tt*2048} sc1")
        kvst.append(f"buffer_store_dwordx4 {vr(P+16+8*tt+4,4)}, v{vVG}, {sr(SWS,4)}, s{sA} offen offset:{tt*2048+512} sc1")
    for k in kvst: a(k)
    a("L_ATTN:")
    st(a, "at", 2)
    sKVS, sKVM, sBLK, sHKV, sOO = sA, sB, sC, sD, sE
    sWE = sF
    def reads2(t):
        b = t % 2; t = t % 8
        a(f"s_mov_b64 exec, s[{sEXV}:{sEXV+1}]")
        a(f"ds_read_b128 {vr(VF+8*b,4)}, v{vV} offset:{t*2048}")
        a(f"ds_read_b128 {vr(VF+8*b+4,4)}, v{vV} offset:{t*2048+512}")
        a("s_mov_b64 exec, -1")
        a(f"ds_read_b128 {vr(KF+4*b,4)}, v{vK} offset:{t*2048}")
    def qk(q, kb):
        a(f"v_mfma_f32_32x32x16_bf16 {vr(S+16*q,16)}, {vr(KF+4*kb,4)}, {vr(Q+4*q,4)}, 0")
    def pv(q, vb, j):
        a(f"v_smfmac_f32_32x32x32_bf16 {vr(O+16*q,16)}, {vr(VF+8*vb+4*j,4)}, {vr(S+16*q+8*j,8)}, v{vIDX}")
    def ex(q, lo, hi):
        for i in range(lo, hi): a(f"v_exp_f32 v{S+16*q+i}, v{S+16*q+i}")
    def chunk(hooks, last=False):
        def hk(u, p):
            if p == 0 and u in PRIO: a(f"s_setprio {3 - PRIO.index(u)}")
            for f in hooks.get((u, p), []): f()
        for t in range(8):
            u = 2*t
            ex(0, 0, 2)
            pv(1, (t-1) % 2, 1)
            hk(u, 0)
            if not (last and t == 7): reads2(t+1)
            ex(0, 2, 5)
            qk(1, t % 2)
            hk(u, 1)
            ex(0, 5, 10)
            pv(0, t % 2, 0)
            hk(u, 2)
            ex(0, 10, 16)
            u += 1
            ex(1, 0, 2)
            pv(0, t % 2, 1)
            hk(u, 0)
            ex(1, 2, 5)
            if not (last and t == 7):
                a("s_waitcnt lgkmcnt(0)")
                qk(0, (t+1) % 2)
            hk(u, 1)
            ex(1, 5, 10)
            pv(1, t % 2, 0)
            hk(u, 2)
            ex(1, 10, 16)
    def boundary(n):
        def f():
            if n == 0: st(a, "at", 6)
            a(f"s_waitcnt vmcnt({n})")
            if n == 0: st(a, "at", 7)
            a("s_barrier")
            if n == 0: st(a, "at", 8)
            a(f"v_xor_b32 v{vK}, {hex(SLOT1)}, v{vK}")
            a(f"v_xor_b32 v{vV}, {hex(SLOT1)}, v{vV}")
        return f
    reads2(0)
    a(f"s_lshl_b32 s{t0}, s{sG}, 1")
    a(f"s_add_u32 s{t0}, s{t0}, s{sHd}")
    a(f"s_lshl_b32 s{sHKV}, s{t0}, 17")
    a(f"s_add_u32 s{sHKV}, s{sHKV}, {WS_KV}")
    a(f"s_lshl_b32 s{t1}, s{sWq}, 12")
    a(f"s_add_u32 s{sKVS}, s{sHKV}, s{t1}")
    a(f"s_lshl_b32 s{sKVM}, s{sHd}, 14")
    a(f"s_add_u32 s{sKVM}, s{sKVM}, s{t1}")
    a(f"s_lshl_b32 s{t0}, s{t0}, 6")
    a(f"s_lshl_b32 s{t1}, s{sT}, 3")
    a(f"s_add_u32 s{t0}, s{t0}, s{t1}")
    a(f"s_lshl_b32 s{t1}, s{sWq}, 1")
    a(f"s_add_u32 s{t0}, s{t0}, s{t1}")
    a(f"s_lshl_b32 s{sOO}, s{t0}, 10")
    a(f"s_add_u32 s{sOO}, s{sOO}, {WS_O}")
    a("s_waitcnt lgkmcnt(0)")
    qk(0, 0)
    a(f"s_add_u32 s{sBLK}, s{sT}, 1")
    a(f"s_and_b32 s{sBLK}, s{sBLK}, 7")
    a(f"s_mov_b32 s{sWE}, 0")
    a(f"s_mov_b32 s{SWO+2}, 0x80000")
    a(f"s_mov_b32 s{SWO+3}, 0x20000")
    a(f"s_lshl_b32 s{sR}, s{sG}, 2")
    a(f"s_and_b32 s{sR}, s{sR}, 12")
    a("s_nop 4")
    def h_signal():
        a(f"s_lshl_b32 s{t0}, s{sG}, 8")
        a(f"s_add_u32 s{t0}, s{t0}, {WS_CNT}")
        a(f"s_lshl_b32 s{t1}, s{sT}, 2")
        a(f"s_lshr_b32 s{t2}, s{sG}, 3")
        a(f"s_add_u32 s{t1}, s{t1}, s{t2}")
        a(f"s_lshl_b32 s{t1}, s{t1}, 8")
        a(f"s_add_u32 s{t1}, s{t1}, {WS_GC}")
        a(f"s_cmp_eq_u32 s{sHd}, 0")
        a(f"s_cselect_b32 s{t1}, s{t0}, s{t1}")
        st(a, "at", 3)
        a("s_waitcnt vmcnt(0)")
        st(a, "at", 4)
        a("s_mov_b64 exec, 1")
        a(f"buffer_atomic_add v{vONE}, v{vZ}, {sr(SWS,4)}, s{t1} offen")
        a("s_mov_b64 exec, -1")
    def h_poll0():
        a(f"s_cmp_eq_u32 s{sHd}, 0")
        a("s_cbranch_scc1 L_NOP0")
        a(f"buffer_load_dword v{vTmp}, v{vZ}, {sr(SWS,4)}, s{t0} offen sc1")
        a("L_NOP0:")
    def h_poll1():
        a(f"s_cmp_eq_u32 s{sHd}, 0")
        a("s_cbranch_scc1 L_NOP1")
        st(a, "at", 3)
        poll(a, "L_CC", vTmp, SWS, f"s{t0}", "s_cmp_ge_u32", 32)
        st(a, "at", 4)
        a(f"s_lshl_b32 s{t0}, s{sG}, 1")
        a(f"s_lshr_b32 s{t1}, s{sWq}, 1")
        a(f"s_add_u32 s{t0}, s{t0}, s{t1}")
        a(f"s_lshl_b32 s{t0}, s{t0}, 17")
        a(f"s_lshl_b32 s{t1}, s{sBLK}, 14")
        a(f"s_add_u32 s{t0}, s{t0}, s{t1}")
        a(f"s_and_b32 s{t1}, s{sWq}, 1")
        a(f"s_lshl_b32 s{t1}, s{t1}, 13")
        a(f"s_add_u32 s{t0}, s{t0}, s{t1}")
        a(f"s_add_u32 s{t0}, s{t0}, {WS_KV}")
        a(f"s_lshl_b32 s{t1}, s{sWq}, 13")
        a(f"s_add_u32 m0, s{t1}, {SLOT1}")
        a(f"s_add_u32 s{t2}, s{t0}, 4096")
        for i in range(4):
            a(f"buffer_load_dwordx4 v{vL16}, {sr(SWS,4)}, s{t0} offen offset:{i*1024} sc1 lds")
        a(f"s_add_u32 m0, s{t1}, {SLOT1 + 4096}")
        a("s_nop 0")
        for i in range(4):
            a(f"buffer_load_dwordx4 v{vL16}, {sr(SWS,4)}, s{t2} offen offset:{i*1024} sc1 lds")
        st(a, "at", 5)
        a("L_NOP1:")
    SIG, PL0, PL1 = [int(x) for x in E("C0", "3,5,6").split(",")]
    chunk({(SIG, 0): [h_signal], (PL0, 0): [h_poll0], (PL1, 0): [h_poll1], (14, 0): [boundary(0)]})
    a(f"s_mov_b32 s{sCNT}, 6")
    a(".p2align 3")
    a("L_ALOOP:")
    def kv_piece(i):
        def f():
            if i == 0:
                a(f"s_add_u32 s{sBLK}, s{sBLK}, 1")
                a(f"s_and_b32 s{sBLK}, s{sBLK}, 7")
                a(f"s_lshl_b32 s{t2}, s{sBLK}, 14")
                a(f"s_mov_b32 m0, s{sKVM}")
                a(f"s_add_u32 s{t2}, s{t2}, s{sKVS}")
            a(f"buffer_load_dwordx4 v{vL16}, {sr(SWS,4)}, s{t2} offen offset:{i*1024} sc1 lds")
            if i == 3:
                a(f"s_xor_b32 s{sKVM}, s{sKVM}, {hex(SLOT1)}")
        return f
    def wo_piece(second):
        def f():
            if not second:
                a(f"s_cmp_lt_u32 s{sWE}, 8")
                a(f"s_cselect_b32 s{SWO}, s{P_AWO}, s{P_BWO}")
                a(f"s_cselect_b32 s{SWO+1}, s{P_AWO+1}, s{P_BWO+1}")
                a(f"s_cselect_b32 s{t0}, 32, 64")
                a(f"s_lshl_b32 s{t1}, s{sWE}, 3")
                a(f"s_add_u32 s{t0}, s{t0}, s{t1}")
                a(f"s_add_u32 s{t0}, s{t0}, s{sW}")
                a(f"s_lshl_b32 m0, s{t0}, 10")
                a(f"s_and_b32 s{t0}, s{t1}, 32")
                a(f"s_and_b32 s{t3}, s{sW}, 1")
                a(f"s_add_u32 s{t0}, s{t0}, s{t3}")
                a(f"s_lshl_b32 s{t1}, s{sWE}, 2")
                a(f"s_lshr_b32 s{t3}, s{sW}, 1")
                a(f"s_add_u32 s{t1}, s{t1}, s{t3}")
                a(f"s_add_u32 s{t1}, s{t1}, s{sR}")
                a(f"s_add_u32 s{sWE}, s{sWE}, 2")
            else:
                a("s_add_u32 m0, m0, 8192")
                a(f"s_add_u32 s{t1}, s{t1}, 4")
            a(f"s_and_b32 s{t3}, s{t1}, 15")
            a(f"s_lshl_b32 s{t3}, s{t3}, 1")
            a(f"s_add_u32 s{t3}, s{t3}, s{t0}")
            a(f"s_lshl_b32 s{t3}, s{t3}, 13")
            a(f"buffer_load_dwordx4 v{vWS}, {sr(SWO,4)}, s{t3} offen lds")
        return f
    def h_count():
        a(f"s_sub_u32 s{sCNT}, s{sCNT}, 1")
        a(f"s_cmp_lg_u32 s{sCNT}, 0")
    chunk({(0, 1): [kv_piece(0)], (2, 1): [kv_piece(1)], (4, 1): [kv_piece(2)], (6, 1): [kv_piece(3)],
           (8, 1): [wo_piece(0)], (10, 1): [wo_piece(1)], (14, 0): [boundary(2)], (15, 0): [h_count]})
    a("s_cbranch_scc1 L_ALOOP")
    st(a, "at", 9)
    def wo_late(i):
        def f():
            if i % 2 == 0:
                a(f"s_lshl_b32 s{t0}, s{sW}, 2")
                a(f"s_add_u32 s{t0}, s{t0}, {i}")
                a(f"s_lshl_b32 m0, s{t0}, 10")
                a(f"s_lshr_b32 s{t3}, s{t0}, 1")
                a(f"s_add_u32 s{t3}, s{t3}, s{sR}")
                a(f"s_and_b32 s{t3}, s{t3}, 15")
                a(f"s_lshl_b32 s{t3}, s{t3}, 14")
                a(f"s_add_u32 s{t3}, s{t3}, {256*1024}")
            else:
                a("s_add_u32 m0, m0, 1024")
                a(f"s_add_u32 s{t3}, s{t3}, 8192")
            a(f"buffer_load_dwordx4 v{vWS}, {sr(SWO,4)}, s{t3} offen lds")
        return f
    def h_gc0():
        a(f"v_and_b32 v{vTm2}, 3, v0")
        a(f"v_lshlrev_b32 v{vTm2}, 8, v{vTm2}")
        a(f"s_lshl_b32 s{t2}, s{sT}, 10")
        a(f"s_add_u32 s{t2}, s{t2}, {WS_GC}")
        a(f"buffer_load_dword v{vTmp}, v{vTm2}, {sr(SWS,4)}, s{t2} offen sc1")
    def h_gc1():
        poll(a, "L_GC", vTmp, SWS, f"s{t2}", None, 32, vaddr=vTm2, lanes="exec")
        a(f"v_and_b32 v{vTm2}, 31, v0")
        a(f"v_lshlrev_b32 v{vTm2}, 2, v{vTm2}")
        a(f"s_lshl_b32 s{t0}, s{sT}, 2")
        a(f"s_add_u32 s{t0}, s{t0}, s{sWq}")
        a(f"s_lshl_b32 s{t0}, s{t0}, 8")
        a(f"s_add_u32 s{t0}, s{t0}, {WS_G}")
        a(f"buffer_load_dword v{vGZ}, v{vTm2}, {sr(SWS,4)}, s{t0} offen sc1")
        a(f"buffer_load_dword v{vGZ+1}, v{vTm2}, {sr(SWS,4)}, s{t0} offen offset:128 sc1")
    chunk({(0, 1): [wo_late(0)], (1, 1): [wo_late(1)], (2, 1): [wo_late(2)], (3, 1): [wo_late(3)],
           (4, 1): [h_gc0], (9, 1): [h_gc1]}, last=True)
    a("s_nop 1")
    pv(1, 1, 1)
    st(a, "p3", 2)
    a(f"s_lshl_b32 s{t0}, s{sHd}, 1")
    a(f"s_xor_b32 s{sKq}, s{sWq}, s{t0}")
    a(f"s_lshl_b32 s{t0}, s{sT}, 2")
    a(f"s_lshr_b32 s{t2}, s{sG}, 3")
    a(f"s_add_u32 s{sA}, s{t0}, s{t2}")
    a(f"s_lshl_b32 s{sB}, s{sKq}, 20")
    a(f"s_lshl_b32 s{t0}, s{sA}, 11")
    a(f"s_add_u32 s{sB}, s{sB}, s{t0}")
    a(f"s_lshl_b32 s{t0}, s{sHd}, 10")
    a(f"s_add_u32 s{sB}, s{sB}, s{t0}")
    a(f"s_add_u32 s{sB}, s{sB}, {WS_O}")
    a(f"s_mov_b32 s{t0}, {hex(LOG2E)}")
    a(f"s_mov_b32 s{t1}, {hex(LOG2E | 0x80000000)}")
    a(f"s_cmp_lt_u32 s{sG}, 16")
    a(f"s_cselect_b32 s{sF}, s{t1}, s{t0}")
    a("s_waitcnt vmcnt(0)")
    for q in range(2):
        o = O + 16*q
        a(f"v_add_f32 v{S+q}, v{o}, v{o+1}")
        for i in range(2, 8): a(f"v_add_f32 v{S+q}, v{S+q}, v{o+i}")
    a(f"s_mov_b32 s{t0}, {hex(f2u(2.0**-24))}")
    a(f"s_mov_b32 s{t1}, {hex(f2u(2.0**64))}")
    a(f"s_movk_i32 s{t2}, 0x207")
    a(f"v_cmp_class_f32 s[4:5], v{S}, s{t2}")
    a(f"v_cmp_class_f32 s[6:7], v{S+1}, s{t2}")
    a(f"v_cmp_nge_f32 s[8:9], v{O+8}, s{t0}")
    a(f"v_cmp_nge_f32 s[10:11], v{O+16+8}, s{t0}")
    a(f"v_cmp_nlt_f32 s[16:17], v{O+8}, s{t1}")
    a(f"v_cmp_nlt_f32 s[18:19], v{O+16+8}, s{t1}")
    a(f"v_mul_f32 v{vGZ}, s{sF}, v{vGZ}")
    a(f"v_mul_f32 v{vGZ+1}, s{sF}, v{vGZ+1}")
    a(f"v_exp_f32 v{vGZ}, v{vGZ}")
    a(f"v_exp_f32 v{vGZ+1}, v{vGZ+1}")
    a("s_or_b64 s[4:5], s[4:5], s[6:7]")
    a("s_or_b64 s[8:9], s[8:9], s[10:11]")
    a("s_or_b64 s[16:17], s[16:17], s[18:19]")
    a("s_or_b64 s[4:5], s[4:5], s[8:9]")
    a("s_or_b64 s[4:5], s[4:5], s[16:17]")
    a("s_cbranch_scc1 L_SLOW")
    a("L_OSTORE:")
    PO = 16
    for q in range(2):
        a(f"v_fma_f32 v{S+2+q}, v{vGZ+q}, v{O+16*q+8}, v{O+16*q+8}")
    for q in range(2):
        a(f"v_rcp_f32 v{S+2+q}, v{S+2+q}")
    a(f"s_mov_b32 s{t0}, -2")
    for q in range(2):
        o = O + 16*q
        for i in range(8): a(f"v_mul_f32 v{o+i}, v{o+i}, v{S+2+q}")
        for i in range(4): a(f"v_cvt_pk_bf16_f32 v{PO+4*q+i}, v{o+2*i}, v{o+2*i+1}")
        for i in range(4): a(f"v_min_u32 v{PO+4*q+i}, s{t0}, v{PO+4*q+i}")
        a(f"buffer_store_dwordx4 {vr(PO+4*q,4)}, v{vL16}, {sr(SWS,4)}, s{sOO} offen offset:{q*1024} sc1")
    st(a, "p3", 3)
    ACC3, OF, WF = [160, 240], 176, 32
    vA0, vA1, vOUT = 8, 9, 10
    SO = list(range(4, 12)) + list(range(16, 24))
    for i in range(16):
        a(f"s_add_u32 s{t0}, s{sR}, {i}")
        a(f"s_and_b32 s{t0}, s{t0}, 15")
        a(f"s_lshl_b32 s{t0}, s{t0}, 16")
        a(f"s_add_u32 s{SO[i]}, s{t0}, s{sB}")
    def oload(i):
        a(f"buffer_load_dwordx4 {vr(OF+4*i,4)}, v{vL16}, {sr(SWS,4)}, s{SO[i]} offen sc1")
    a("s_barrier")
    st(a, "p3", 4)
    for i in range(16): oload(i)
    st(a, "p3", 5)
    a("v_lshrrev_b32 v11, 5, v0")
    a("v_bfe_u32 v12, v0, 2, 2")
    a("v_lshl_add_u32 v12, v11, 2, v12")
    a("v_lshlrev_b32 v12, 7, v12")
    a("v_bfe_u32 v13, v0, 4, 1")
    a("v_lshlrev_b32 v13, 1, v13")
    a("v_and_b32 v14, 1, v0")
    a("v_or_b32 v13, v13, v14")
    a("v_bfe_u32 v14, v0, 3, 1")
    a("v_lshl_or_b32 v13, v14, 2, v13")
    a(f"s_lshl_b32 s{t0}, s{sKq}, 1")
    a(f"v_xor_b32 v13, s{t0}, v13")
    a("v_lshl_add_u32 v12, v13, 4, v12")
    a("v_bfe_u32 v14, v0, 1, 1")
    a("v_lshl_add_u32 v12, v14, 3, v12")
    a(f"s_add_u32 s{t0}, s{sKq}, 1")
    a(f"s_cmp_eq_u32 s{sKq}, 2")
    a(f"s_cselect_b32 s{t0}, 4, s{t0}")
    a(f"s_cmp_eq_u32 s{sKq}, 3")
    a(f"s_cselect_b32 s{t0}, 0, s{t0}")
    a(f"s_lshl_b32 s{t0}, s{t0}, 15")
    a(f"v_add_u32 v{vA0}, s{t0}, v12")
    a(f"v_xor_b32 v{vA1}, 64, v{vA0}")
    if SSET == "p3" and DIAG: a("s_waitcnt lgkmcnt(0)")
    for i in range(16):
        for ct in range(2):
            for i2 in range(2):
                a(f"ds_read_b64_tr_b16 {vr(WF+8*i+4*ct+2*i2,2)}, v{vA0+ct} offset:{(2*i+i2)*1024}")
    a(f"s_lshl_b32 s{t0}, s{sA}, 6")
    a(f"s_lshl_b32 s{t2}, s{sHd}, 5")
    a(f"s_add_u32 s{t0}, s{t0}, s{t2}")
    a("v_and_b32 v12, 31, v0")
    a(f"v_add_u32 v12, s{t0}, v12")
    a("v_lshlrev_b32 v12, 10, v12")
    a(f"v_lshl_add_u32 v{vOUT}, v11, 4, v12")
    srd(a, SOUT, P_OUT, 0x200000)
    a(f"s_and_b32 s{sC}, s{sG}, 7")
    a(f"s_lshl_b32 s{sC}, s{sC}, 7")
    a(f"s_lshl_b32 s{t0}, s{sKq}, 5")
    a(f"s_add_u32 s{sC}, s{sC}, s{t0}")
    for g in range(1, 4):
        a(f"s_xor_b32 s{t0}, s{sW}, {g}")
        a(f"s_mul_i32 s{t0}, s{t0}, 6144")
        a(f"s_add_u32 s{t0}, s{t0}, {(g-1)*2048}")
        a(f"v_add_u32 v{10+g}, s{t0}, v{vL16}")
    a(f"s_mul_i32 s{t0}, s{sW}, 6144")
    a(f"v_add_u32 v14, s{t0}, v{vL16}")
    for ct in range(2):
        for i in range(16): a(f"v_mov_b32 v{ACC3[ct]+i}, 0")
    a(f"s_mov_b32 s{sMask}, 0")
    a("s_waitcnt lgkmcnt(0)")
    a("s_barrier")
    st(a, "p3", 6)
    def consume(i, lab):
        f = OF + 4*i
        a(f"v_max3_u32 v{vTmp}, v{f}, v{f+1}, v{f+2}")
        a(f"v_max_u32 v{vTmp}, v{vTmp}, v{f+3}")
        a(f"v_cmp_eq_u32 vcc, -1, v{vTmp}")
        a(f"s_cbranch_vccnz {lab}_N")
        for ct in range(2):
            acc = vr(ACC3[ct], 16)
            a(f"v_mfma_f32_32x32x16_bf16 {acc}, {vr(WF+8*i+4*ct,4)}, {vr(f,4)}, {acc}")
        a(f"s_bitset1_b32 s{sMask}, {i}")
        a(f"{lab}_N:")
    for i in range(16):
        a(f"s_waitcnt vmcnt({15-i})")
        consume(i, f"L_F{i}")
    a(f"s_mov_b32 s{sCNT}, {SPIN}")
    a("L_RETRY:")
    a(f"s_cmp_eq_u32 s{sMask}, 0xffff")
    a("s_cbranch_scc1 L_P3DONE")
    a(f"s_sub_u32 s{sCNT}, s{sCNT}, 1")
    a("s_cbranch_scc1 L_P3DONE")
    for i in range(16):
        a(f"s_bitcmp1_b32 s{sMask}, {i}")
        a(f"s_cbranch_scc1 L_RL{i}")
        oload(i)
        a(f"L_RL{i}:")
    a("s_waitcnt vmcnt(0)")
    for i in range(16):
        a(f"s_bitcmp1_b32 s{sMask}, {i}")
        a(f"s_cbranch_scc1 L_R{i}_N")
        consume(i, f"L_R{i}")
    a("s_branch L_RETRY")
    a("L_P3DONE:")
    st(a, "p3", 7)
    a("s_nop 11")
    def grp(g, i): return ACC3[g >> 1] + 8*(g & 1) + 4*i
    for g in range(1, 4):
        for i in range(2):
            a(f"ds_write_b128 v{10+g}, {vr(grp(g,i),4)} offset:{i*1024}")
    a("s_waitcnt lgkmcnt(0)")
    a("s_barrier")
    st(a, "p3", 8)
    R = OF
    for g in range(1, 4):
        for i in range(2):
            a(f"ds_read_b128 {vr(R+8*(g-1)+4*i,4)}, v14 offset:{(g-1)*2048+i*1024}")
    A0 = ACC3[0]
    a("s_waitcnt lgkmcnt(4)")
    for i in range(8): a(f"v_add_f32 v{A0+i}, v{A0+i}, v{R+i}")
    a("s_waitcnt lgkmcnt(0)")
    for i in range(8): a(f"v_add_f32 v{R+8+i}, v{R+8+i}, v{R+16+i}")
    for i in range(8): a(f"v_add_f32 v{A0+i}, v{A0+i}, v{R+8+i}")
    for i in range(4): a(f"v_cvt_pk_bf16_f32 v{PO+i}, v{A0+2*i}, v{A0+2*i+1}")
    a(f"buffer_store_dwordx4 {vr(PO,4)}, v{vOUT}, {sr(SOUT,4)}, s{sC} offen")
    st(a, "p3", 9)
    diag_store(a)
    a("L_END:")
    a("s_endpgm")
    a("L_SLOW:")
    M = S + 16
    for q in range(2):
        a(f"v_mov_b32 v{vTmp}, 0xff800000")
        a(f"s_mov_b32 s{t0}, s{sHKV}")
        a(f"s_mov_b32 s{t1}, 64")
        a(f"L_SM{q}:")
        a(f"buffer_load_dwordx4 {vr(KF,4)}, v{vL16}, {sr(SWS,4)}, s{t0} offen sc1")
        a("s_waitcnt vmcnt(0)")
        a(f"v_mfma_f32_32x32x16_bf16 {vr(S,16)}, {vr(KF,4)}, {vr(Q+4*q,4)}, 0")
        a("s_nop 15")
        for i in range(8): a(f"v_max3_f32 v{vTmp}, v{S+2*i}, v{S+2*i+1}, v{vTmp}")
        a(f"s_add_u32 s{t0}, s{t0}, 2048")
        a(f"s_sub_u32 s{t1}, s{t1}, 1")
        a(f"s_cmp_lg_u32 s{t1}, 0")
        a(f"s_cbranch_scc1 L_SM{q}")
        a(f"v_mov_b32 v1, v{vTmp}")
        a("s_nop 1")
        a(f"v_permlane32_swap_b32 v1, v{vTmp}")
        a("s_nop 1")
        a(f"v_max_f32 v{vTmp}, v1, v{vTmp}")
        for i in range(16): a(f"v_sub_f32 v{M+i}, 0, v{vTmp}")
        for i in range(16): a(f"v_mov_b32 v{O+16*q+i}, 0")
        a(f"s_mov_b32 s{t0}, s{sHKV}")
        a(f"s_mov_b32 s{t1}, 64")
        a(f"L_SP{q}:")
        a(f"buffer_load_dwordx4 {vr(KF,4)}, v{vL16}, {sr(SWS,4)}, s{t0} offen sc1")
        a(f"s_mov_b64 exec, s[{sEXV}:{sEXV+1}]")
        a(f"buffer_load_dwordx4 {vr(VF,4)}, v{vVg}, {sr(SWS,4)}, s{t0} offen sc1")
        a(f"buffer_load_dwordx4 {vr(VF+4,4)}, v{vVg}, {sr(SWS,4)}, s{t0} offen offset:512 sc1")
        a("s_mov_b64 exec, -1")
        a("s_waitcnt vmcnt(0)")
        a(f"v_mfma_f32_32x32x16_bf16 {vr(S,16)}, {vr(KF,4)}, {vr(Q+4*q,4)}, {vr(M,16)}")
        a("s_nop 15")
        for i in range(16): a(f"v_exp_f32 v{S+i}, v{S+i}")
        a("s_nop 1")
        for j in range(2):
            a(f"v_smfmac_f32_32x32x32_bf16 {vr(O+16*q,16)}, {vr(VF+4*j,4)}, {vr(S+8*j,8)}, v{vIDX}")
        a(f"s_add_u32 s{t0}, s{t0}, 2048")
        a(f"s_sub_u32 s{t1}, s{t1}, 1")
        a(f"s_cmp_lg_u32 s{t1}, 0")
        a("s_nop 15")
        a(f"s_cbranch_scc1 L_SP{q}")
    a("s_branch L_OSTORE")
    return 256

def build():
    body = Asm()
    nv = gen(body)
    descs = Asm()
    kernel_desc(descs, NAME, nv, nv)
    head = HEADER + f"; @launch grid=(256,1,1) block=(512,1,1) lds={LDS_BYTES}\n"
    return head + '.amdgcn_target "amdgcn-amd-amdhsa--gfx950"\n' + body.text() + descs.text()

if __name__ == "__main__":
    out = sys.argv[1] if len(sys.argv) > 1 else 'gated_mix__softmax_full_mha__mha_block__prompt.s'
    open(out, 'w').write(build())
```
